```python
import torch

def _softmax(x, axis=-1):
    return torch.softmax(x, dim=axis)

def _gelu(x):
    return torch.nn.functional.gelu(x, approximate='tanh')

def _silu(x):
    return torch.nn.functional.silu(x)

def _sigmoid(x):
    return torch.sigmoid(x)

def _layernorm(x, axis=-1, eps=1e-05):
    m = x.mean(dim=axis, keepdim=True)
    v = x.var(dim=axis, keepdim=True, unbiased=False)
    return (x - m) / torch.sqrt(v + eps)

def _scatter_add(tgt, idx, src, axis=0):
    return tgt.clone().index_add_(axis, idx, src)

def _segment_sum(src, seg, n):
    out = torch.zeros((n,) + src.shape[1:], dtype=src.dtype)
    return out.index_add_(0, seg, src)

def _pad(x, pw):
    flat = tuple((v for pair in reversed(pw) for v in pair))
    return torch.nn.functional.pad(x, flat)
kernel_name = 'adaLN_cond__mha_block_cached__geglu_ffn__prompt'

def setup_inputs():

    _w = lambda a: (lambda t: t.to(torch.bfloat16) if t.is_floating_point() else t)(torch.as_tensor(a))

    def _A_setup():
        B, Sq, D = (1, 2048, 512)
        H, Sk, Dh = (32, 2048, 128)
        return {'x': _w((lambda *s: torch.randn(*s, dtype=torch.bfloat16) * 0.1)(B, Sq, D)), 'k_cache': _w((lambda *s: torch.randn(*s, dtype=torch.bfloat16) * 0.8)(B, H, Sk, Dh)), 'v_cache': _w((lambda *s: torch.randn(*s, dtype=torch.bfloat16) * 1.6)(B, H, Sk, Dh)), 'wq': _w((lambda *s: torch.randn(*s, dtype=torch.bfloat16) * 0.8)(D, H * Dh) * D ** (-0.5)), 'wo': _w((lambda *s: torch.randn(*s, dtype=torch.bfloat16) * 1.6)(H * Dh, D) * (H * Dh) ** (-0.5))}
    _A_in = _A_setup()

    def _B_setup():
        B, S, D, F = (1, 2048, 512, 1792)
        return {'x': _w((lambda *s: torch.randn(*s, dtype=torch.bfloat16) * 0.1)(B, S, D)), 'w_gate': _w((lambda *s: torch.randn(*s, dtype=torch.bfloat16) * 0.1)(D, F)), 'w_up': _w((lambda *s: torch.randn(*s, dtype=torch.bfloat16) * 0.1)(D, F)), 'w_down': _w((lambda *s: torch.randn(*s, dtype=torch.bfloat16) * 0.1)(F, D))}
    _B_in = _B_setup()
    return {'A_x': _A_in['x'], 'A_k_cache': _A_in['k_cache'], 'A_v_cache': _A_in['v_cache'], 'A_wq': _A_in['wq'], 'A_wo': _A_in['wo'], 'B_x': _B_in['x'], 'B_w_gate': _B_in['w_gate'], 'B_w_up': _B_in['w_up'], 'B_w_down': _B_in['w_down'], 'c': _w((lambda *s: torch.randn(*s, dtype=torch.bfloat16) * 0.8)(1, 512) * 8.0), 'w_mod': _w((lambda *s: torch.randn(*s, dtype=torch.bfloat16) * 0.8)(512, 6 * 512) * 512 ** (-0.5) * 8.0)}

def reference(A_x, A_k_cache, A_v_cache, A_wq, A_wo, B_x, B_w_gate, B_w_up, B_w_down, c, w_mod):

    def _A_ref(x, k_cache, v_cache, wq, wo):
        B, Sq, D = x.shape
        H, Dh = (32, 128)
        q = (lambda x, *d: x.permute(*d))((x @ wq).reshape(B, Sq, H, Dh), 0, 2, 1, 3)
        scores = torch.einsum('bhqd,bhkd->bhqk', q, k_cache) * Dh ** (-0.5)
        p = _softmax(scores, axis=-1)
        o = torch.einsum('bhqk,bhkd->bhqd', p, v_cache)
        return (lambda x, *d: x.permute(*d))(o, 0, 2, 1, 3).reshape(B, Sq, H * Dh) @ wo

    def _B_ref(x, w_gate, w_up, w_down):
        return _gelu(x @ w_gate) * (x @ w_up) @ w_down
    x = A_x
    mod = (_silu(c) @ w_mod).reshape(c.shape[0], 6, 1, -1)
    sa, ca, ga, sb, cb, gb = (mod[:, 0].clone(), mod[:, 1].clone(), mod[:, 2].clone(), mod[:, 3].clone(), mod[:, 4].clone(), mod[:, 5].clone())
    h = _layernorm(x, axis=-1) * (1 + ca) + sa
    x = x + ga * _A_ref(h, A_k_cache, A_v_cache, A_wq, A_wo)
    h = _layernorm(x, axis=-1) * (1 + cb) + sb
    x = x + gb * _B_ref(h, B_w_gate, B_w_up, B_w_down)
    return x
```

```python
import re

TRANS = ("v_exp_f32", "v_log_f32", "v_rcp_f32", "v_rsq_f32", "v_sqrt_f32", "v_sin_f32", "v_cos_f32",
         "v_rcp_iflag_f32")

_reg_re = re.compile(r"^(-|\|)?(abs\()?([vas])(\d+|\[(\d+):(\d+)\])\)?\|?$")


def regs_of(tok):
    tok = tok.strip()
    if tok in ("vcc",):
        return ["vcc_lo", "vcc_hi"]
    if tok in ("vcc_lo", "vcc_hi", "m0"):
        return [tok]
    if tok in ("exec",):
        return ["exec_lo", "exec_hi"]
    if tok in ("exec_lo", "exec_hi"):
        return [tok]
    m = _reg_re.match(tok)
    if not m:
        return []
    k = m.group(3)
    if m.group(5) is not None:
        return [f"{k}{i}" for i in range(int(m.group(5)), int(m.group(6)) + 1)]
    return [f"{k}{m.group(4)}"]


class Inst:
    __slots__ = ("text", "op", "dst", "src", "kind", "passes", "srcc", "srcab", "ws", "target", "wide_store",
                 "lds_dma", "is_load", "dpp", "comment")

    def __init__(self, text):
        self.comment = ""
        if ";" in text:
            text, self.comment = text.split(";", 1)
        text = text.strip()
        self.text = text
        parts = text.split(None, 1)
        op = parts[0]
        self.op = op
        rest = parts[1] if len(parts) > 1 else ""
        ops = [o.strip() for o in rest.split(",")] if rest else []
        mods = ""
        if ops:
            last = ops[-1].split(None, 1)
            ops[-1] = last[0]
            if len(last) > 1:
                mods = last[1]
        self.dst = set()
        self.src = set()
        self.srcc = []
        self.srcab = set()
        self.passes = 0
        self.ws = 1
        self.target = None
        self.wide_store = None
        self.lds_dma = False
        self.is_load = False
        self.dpp = ("row_" in mods or "quad_perm" in mods or "wave_" in mods)
        base = op.replace("_e32", "").replace("_e64", "")
        R = [regs_of(o) for o in ops]
        if op.startswith("v_mfma"):
            self.kind = "mfma"
            self.passes = 8 if "32x32" in op else 4
            self.dst = set(R[0])
            self.srcab = set(R[1] + R[2])
            self.srcc = R[3]
            self.src = self.srcab | set(R[3])
        elif op.startswith("v_"):
            self.kind = "trans" if base in TRANS else "valu"
            if base.startswith("v_cmp"):
                self.dst = set(R[0])
                for r in R[1:]:
                    self.src |= set(r)
            elif base.startswith("v_permlane") and "swap" in base:
                self.dst = set(R[0] + R[1])
                self.src = set(R[0] + R[1])
            elif base in ("v_add_co_u32", "v_sub_co_u32", "v_addc_co_u32", "v_subb_co_u32", "v_div_scale_f32",
                          "v_mad_u64_u32"):
                self.dst = set(R[0] + R[1])
                for r in R[2:]:
                    self.src |= set(r)
            else:
                self.dst = set(R[0])
                for r in R[1:]:
                    self.src |= set(r)
                if base in ("v_fmac_f32", "v_pk_fmac_f16", "v_dot2c_f32_bf16", "v_writelane_b32"):
                    self.src |= set(R[0])
                if base == "v_cndmask_b32" and len(ops) == 3:
                    self.src |= {"vcc_lo", "vcc_hi"}
                if base == "v_div_fmas_f32":
                    self.src |= {"vcc_lo", "vcc_hi"}
        elif op.startswith("buffer_") or op.startswith("global_"):
            self.kind = "vmem"
            allm = " ".join([mods] + ops)
            mo = re.search(r"offset:(-?\d+)", mods)
            if mo:
                assert 0 <= int(mo.group(1)) < 4096, "vmem offset out of range: " + text
            if "load" in op and (re.search(r"\blds\b", allm) or "_lds_" in op):
                self.lds_dma = True
                for r in R:
                    self.src |= set(r)
                self.src.add("m0")
            elif "load" in op:
                self.is_load = True
                self.dst = set(R[0])
                for r in R[1:]:
                    self.src |= set(r)
            elif "atomic" in op:
                for r in R:
                    self.src |= set(r)
                if "sc0" in mods:
                    self.is_load = True
                    self.dst = set(R[0])
            elif "store" in op:
                for r in R:
                    self.src |= set(r)
                if "x4" in op or "x3" in op:
                    self.wide_store = set(R[0] if op.startswith("buffer_") else R[1])
            else:
                pass
        elif op.startswith("ds_"):
            self.kind = "ds"
            if "read" in op or "permute" in op or "swizzle" in op:
                self.is_load = True
                self.dst = set(R[0])
                for r in R[1:]:
                    self.src |= set(r)
            else:
                for r in R:
                    self.src |= set(r)
        elif op.startswith("s_load") or op.startswith("s_buffer_load") or op.startswith("s_mem"):
            self.kind = "smem"
            self.is_load = True
            self.dst = set(R[0])
            for r in R[1:]:
                self.src |= set(r)
        elif op == "s_nop":
            self.kind = "nop"
            self.ws = int(ops[0], 0) + 1
        elif op == "s_waitcnt":
            self.kind = "wait"
        elif op in ("s_barrier", "s_endpgm", "s_setprio", "s_sleep", "s_sendmsg"):
            self.kind = "misc"
        elif op.startswith("s_cbranch") or op == "s_branch":
            self.kind = "branch"
            self.target = ops[0]
            if "vcc" in op:
                self.src = {"vcc_lo", "vcc_hi"}
            if "scc" in op:
                self.src = {"scc"}
            if "exec" in op:
                self.src = {"exec_lo", "exec_hi"}
        elif op.startswith("s_"):
            self.kind = "salu"
            if op.startswith("s_cmp") or op.startswith("s_bitcmp"):
                for r in R:
                    self.src |= set(r)
                self.dst = {"scc"}
            else:
                self.dst = set(R[0]) if R else set()
                for r in R[1:]:
                    self.src |= set(r)
                if "saveexec" in op:
                    self.dst |= {"exec_lo", "exec_hi"}
                    self.src |= {"exec_lo", "exec_hi"}
                if op in ("s_addk_i32", "s_mulk_i32"):
                    self.src |= set(R[0])
        else:
            raise ValueError("unknown instruction: " + text)

    def waits(self):
        vm = re.search(r"vmcnt\((\d+)\)", self.text)
        lg = re.search(r"lgkmcnt\((\d+)\)", self.text)
        return (int(vm.group(1)) if vm else None, int(lg.group(1)) if lg else None)


class Label:
    def __init__(self, name):
        self.name = name


class Raw:
    def __init__(self, text):
        self.text = text


class Prog:
    def __init__(self, name="k"):
        self.items = []
        self.name = name
        self.uid = 0

    def I(self, text):
        for line in text.strip().split("\n"):
            line = line.strip()
            if not line:
                continue
            if line.startswith(";"):
                self.items.append(Raw("    " + line))
                continue
            self.items.append(Inst(line))

    __call__ = I

    def label(self, name):
        self.items.append(Label(name))

    def raw(self, text):
        self.items.append(Raw(text))

    def newlabel(self, base="L"):
        self.uid += 1
        return f"{self.name}_{base}{self.uid}"

    def fix(self, verbose=False, check_waits=True):
        items = self.items
        labels = {}

        def index_labels():
            labels.clear()
            for i, it in enumerate(items):
                if isinstance(it, Label):
                    labels[it.name] = i

        index_labels()
        t = 0
        lastw = {}
        lastc = {}
        lastst = {}
        vmq = []
        lgq = []
        taken = set()
        i = 0
        nins = 0
        errors = []
        while i < len(items):
            it = items[i]
            if not isinstance(it, Inst):
                i += 1
                continue
            need = 0

            def req(tw, n):
                nonlocal need
                d = n - (t - tw - 1)
                if d > need:
                    need = d

            k = it.kind
            isvalu = k in ("valu", "trans")
            for r in it.src | it.dst:
                if r not in lastw:
                    continue
                tw, wk, wp, winst = lastw[r]
                isread = r in it.src
                if wk == "mfma":
                    if k == "mfma":
                        if r in it.srcab:
                            req(tw, 12 if wp == 8 else 8)
                        elif r in it.srcc:
                            if set(it.srcc) == winst.dst and it.passes == wp:
                                pass
                            else:
                                req(tw, 10 if wp == 8 else 6)
                        elif r in it.dst:
                            req(tw, 10 if wp == 8 else 6)
                    elif isvalu or k in ("vmem", "ds"):
                        req(tw, 12 if wp == 8 else 8)
                elif wk in ("valu", "trans"):
                    if r[0] in "va" and r[:3] != "vcc":
                        if not isread:
                            continue
                        if k == "mfma":
                            req(tw, 2)
                        elif isvalu:
                            if wk == "trans" and k != "trans":
                                req(tw, 1)
                            if it.op.startswith("v_readlane") or it.op.startswith("v_readfirstlane"):
                                req(tw, 1)
                            if it.op.startswith("v_permlane"):
                                req(tw, 2)
                            if it.dpp:
                                req(tw, 2)
                        elif k in ("vmem", "ds") and wk == "trans":
                            req(tw, 1)
                    else:
                        if not isread:
                            continue
                        if k == "vmem":
                            req(tw, 5)
                        elif isvalu:
                            if it.op.startswith("v_readlane") or it.op.startswith("v_writelane"):
                                req(tw, 4)
                            elif it.op.startswith("v_div_fmas"):
                                req(tw, 4)
                            else:
                                req(tw, 2)
                        elif k in ("salu", "branch", "smem"):
                            req(tw, 1)
                elif wk == "salu":
                    if r == "m0" and it.lds_dma:
                        req(tw, 1)
                    if r.startswith("exec") and False:
                        pass
            if isvalu:
                for r in it.dst:
                    if r in lastc:
                        tc, pc = lastc[r]
                        req(tc, 7 if pc == 8 else 3)
                    if r in lastst:
                        req(lastst[r], 2)
            elif it.is_load or k == "mfma":
                for r in it.dst:
                    if r in lastst:
                        req(lastst[r], 1)
            if need > 0:
                nop = Inst(f"s_nop {need - 1}")
                items.insert(i, nop)
                index_labels()
                nins += 1
                continue
            if check_waits:
                touched = it.src | it.dst
                for q, nm in ((vmq, "vmcnt"), (lgq, "lgkmcnt")):
                    for (d, txt) in q:
                        if d & touched:
                            errors.append(f"[{self.name}] pending {nm} load '{txt}' touched by '{it.text}' (item {i})")
                if k == "wait":
                    vm, lg = it.waits()
                    if vm is not None:
                        while len(vmq) > vm:
                            vmq.pop(0)
                    if lg is not None:
                        if lg == 0:
                            lgq.clear()
                        else:
                            if any(txt.startswith("s_") for _, txt in lgq):
                                pass
                            else:
                                while len(lgq) > lg:
                                    lgq.pop(0)
                if k == "vmem":
                    vmq.append((set(it.dst) if it.is_load else set(), it.text))
                elif k in ("ds", "smem"):
                    lgq.append((set(it.dst) if it.is_load else set(), it.text))
            for r in it.dst:
                lastw[r] = (t, k, it.passes, it)
            if k == "mfma":
                for r in it.srcc:
                    lastc[r] = (t, it.passes)
            if it.wide_store:
                for r in it.wide_store:
                    lastst[r] = t
            t += it.ws
            if k == "branch" and it.target in labels and labels[it.target] < i and id(it) not in taken:
                taken.add(id(it))
                i = labels[it.target]
                continue
            if it.op == "s_endpgm" or it.op == "s_branch":
                vmq.clear()
                lgq.clear()
            i += 1
        if errors:
            seen = []
            for e in errors:
                if e not in seen:
                    seen.append(e)
            raise RuntimeError("\n".join(seen[:30]))
        if verbose:
            print(f"{self.name}: inserted {nins} nops; {sum(isinstance(x, Inst) for x in items)} instructions")

    def text(self):
        out = []
        for it in self.items:
            if isinstance(it, Inst):
                out.append("    " + it.text + (("    ;" + it.comment) if it.comment else ""))
            elif isinstance(it, Label):
                out.append(it.name + ":")
            else:
                out.append(it.text)
        return "\n".join(out) + "\n"

    def max_regs(self):
        mv = ma = ms = -1
        for it in self.items:
            if isinstance(it, Inst):
                for r in it.src | it.dst:
                    if r[0] == "v" and r[1:].isdigit():
                        mv = max(mv, int(r[1:]))
                    elif r[0] == "a" and r[1:].isdigit():
                        ma = max(ma, int(r[1:]))
                    elif r[0] == "s" and r[1:].isdigit():
                        ms = max(ms, int(r[1:]))
        return mv + 1, ma + 1, ms + 1


def kernel_text(name, prog, acc_at=None):
    nv, na, ns = prog.max_regs()
    nv = max(nv, 1)
    acc = (nv + 3) // 4 * 4
    if acc_at is not None:
        assert acc_at >= acc
        acc = acc_at
    nfv = acc + na if na else nv
    if na == 0:
        acc = (nv + 3) // 4 * 4
    body = f""".globl {name}
.p2align 8
.type {name},@function
{name}:
{prog.text()}"""
    desc = f""".p2align 6
.amdhsa_kernel {name}
  .amdhsa_next_free_vgpr {nfv}
  .amdhsa_next_free_sgpr {max(ns, 8)}
  .amdhsa_accum_offset {acc}
  .amdhsa_group_segment_fixed_size 0
  .amdhsa_kernarg_size 112
  .amdhsa_user_sgpr_count 2
  .amdhsa_user_sgpr_kernarg_segment_ptr 1
  .amdhsa_system_sgpr_workgroup_id_x 1
  .amdhsa_float_denorm_mode_32 3
.end_amdhsa_kernel
"""
    return body, desc, (nv, na, ns, nfv)
```

```python
import sys, os
sys.path.insert(0, os.path.dirname(os.path.abspath(__file__)))
from asmlib import Prog, kernel_text
import struct

NAME = "adaLN_cond__mha_block_cached__geglu_ffn__prompt"

KA = dict(x=0, k=8, v=16, wq=24, wo=32, bx=40, wg=48, wu=56, wd=64, c=72, wmod=80, out=88, dbg=96, ws=104)
WS_MOD = 0
WS_H = 0x100000
WS_O = 0x400000
WS_X1 = 0x1400000
WS_H2 = 0x1600000
WS_G = 0x1800000

OPT = dict(mimic=True)


def f2u(f):
    return struct.unpack("<I", struct.pack("<f", f))[0]


def hx(f):
    return "0x%08x" % f2u(f)


LOG2E = 1.4426950408889634
SCALE = 128 ** -0.5


def srd(p, d, base, off, size):
    if isinstance(off, int):
        if off:
            p(f"s_add_u32 s{d}, s{base}, 0x{off:x}")
            p(f"s_addc_u32 s{d+1}, s{base+1}, 0")
        else:
            p(f"s_mov_b32 s{d}, s{base}")
            p(f"s_mov_b32 s{d+1}, s{base+1}")
    else:
        p(f"s_add_u32 s{d}, s{base}, {off}")
        p(f"s_addc_u32 s{d+1}, s{base+1}, 0")
    if isinstance(size, int):
        p(f"s_mov_b32 s{d+2}, 0x{size:x}")
    else:
        p(f"s_mov_b32 s{d+2}, {size}")
    p(f"s_mov_b32 s{d+3}, 0x00020000")


def rbf(p, dst, src):
    p(f"v_cvt_pk_bf16_f32 v{dst}, v{src}, v{src}")
    p(f"v_lshlrev_b32 v{dst}, 16, v{dst}")


def rbf2(p, d0, d1, s0, s1, tmp):
    p(f"v_cvt_pk_bf16_f32 v{tmp}, v{s0}, v{s1}")
    p(f"v_lshlrev_b32 v{d0}, 16, v{tmp}")
    p(f"v_and_b32 v{d1}, 0xffff0000, v{tmp}")


def wave_reduce(p, op, v, t):
    for dpp in ("quad_perm:[1,0,3,2]", "quad_perm:[2,3,0,1]", "row_half_mirror", "row_mirror"):
        p(f"{op}_dpp v{v}, v{v}, v{v} {dpp} row_mask:0xf bank_mask:0xf")
    p(f"v_mov_b32 v{t}, v{v}")
    p(f"v_permlane16_swap_b32 v{v}, v{t}")
    p(f"{op} v{v}, v{v}, v{t}")
    p(f"v_mov_b32 v{t}, v{v}")
    p(f"v_permlane32_swap_b32 v{v}, v{t}")
    p(f"{op} v{v}, v{v}, v{t}")


def gen_mod():
    p = Prog("mod")
    p("s_cmp_ge_u32 s2, 96")
    p("s_cbranch_scc1 mod_end")
    p(f"s_load_dwordx2 s[4:5], s[0:1], {KA['c']}")
    p(f"s_load_dwordx2 s[6:7], s[0:1], {KA['wmod']}")
    p(f"s_load_dwordx2 s[8:9], s[0:1], {KA['ws']}")
    p("v_and_b32 v1, 3, v0")
    p("v_lshrrev_b32 v2, 2, v0")
    p("v_lshlrev_b32 v3, 1, v2")
    p("v_mul_u32_u24 v4, 6144, v2")
    p("v_lshl_add_u32 v4, v1, 4, v4")
    p("s_lshl_b32 s3, s2, 6")
    p("s_waitcnt lgkmcnt(0)")
    srd(p, 12, 4, 0, 1024)
    srd(p, 16, 6, 0, 512 * 3072 * 2)
    srd(p, 20, 8, WS_MOD, 3072 * 4)
    for i in range(8):
        p(f"buffer_load_ushort v{8+i}, v3, s[12:15], 0 offen offset:{128*i}")
    for i in range(8):
        p(f"s_add_u32 s24, s3, {393216*i}")
        p(f"buffer_load_dwordx4 v[{16+4*i}:{19+4*i}], v4, s[16:19], s24 offen")
    for j in range(8):
        p(f"v_mov_b32 v{48+j}, 0")
    p("s_waitcnt vmcnt(8)")
    for i in range(8):
        x = 8 + i
        p(f"v_lshlrev_b32 v{x}, 16, v{x}")
        p(f"v_mul_f32 v5, {hx(-LOG2E)}, v{x}")
        p("v_exp_f32 v5, v5")
        p("v_add_f32 v5, 1.0, v5")
        p("v_rcp_f32 v5, v5")
        p(f"v_mul_f32 v{x}, v{x}, v5")
        rbf(p, x, x)
    for i in range(8):
        p(f"s_waitcnt vmcnt({7-i})")
        for q in range(4):
            w = 16 + 4 * i + q
            p(f"v_lshlrev_b32 v5, 16, v{w}")
            p(f"v_and_b32 v6, 0xffff0000, v{w}")
            p(f"v_fmac_f32 v{48+2*q}, v{8+i}, v5")
            p(f"v_fmac_f32 v{49+2*q}, v{8+i}, v6")
    p("v_lshlrev_b32 v5, 7, v2")
    p("v_lshl_add_u32 v5, v1, 5, v5")
    p("ds_write_b128 v5, v[48:51]")
    p("ds_write_b128 v5, v[52:55] offset:16")
    p("s_waitcnt lgkmcnt(0)")
    p("s_barrier")
    p("v_and_b32 v6, 31, v0")
    p("v_lshrrev_b32 v7, 5, v0")
    p("v_lshlrev_b32 v5, 10, v7")
    p("v_lshl_add_u32 v5, v6, 2, v5")
    for i in range(8):
        p(f"ds_read_b32 v{8+i}, v5 offset:{128*i}")
    p("s_waitcnt lgkmcnt(0)")
    for i in range(1, 8):
        p(f"v_add_f32 v8, v8, v{8+i}")
    p("v_lshlrev_b32 v5, 2, v0")
    p("ds_write_b32 v5, v8 offset:8192")
    p("s_waitcnt lgkmcnt(0)")
    p("s_barrier")
    p("v_lshlrev_b32 v5, 2, v6")
    for i in range(8):
        p(f"ds_read_b32 v{8+i}, v5 offset:{8192+128*i}")
    p("s_waitcnt lgkmcnt(0)")
    for i in range(1, 8):
        p(f"v_add_f32 v8, v8, v{8+i}")
    rbf(p, 8, 8)
    p("s_lshl_b32 s3, s2, 7")
    p("buffer_store_dword v8, v5, s[20:23], s3 offen")
    p.label("mod_end")
    p("s_endpgm")
    return p


def gen_ln(name, src_is_ws, src_off, dst_off, shift_idx, scale_idx):
    p = Prog(name)
    p("s_cmp_ge_u32 s2, 512")
    p(f"s_cbranch_scc1 {name}_end")
    p(f"s_load_dwordx2 s[4:5], s[0:1], {KA['x']}")
    p(f"s_load_dwordx2 s[8:9], s[0:1], {KA['ws']}")
    p("v_lshlrev_b32 v1, 4, v0")
    p("v_and_b32 v2, 63, v0")
    p("v_lshlrev_b32 v2, 5, v2")
    p("s_lshl_b32 s3, s2, 12")
    p("s_waitcnt lgkmcnt(0)")
    if src_is_ws:
        srd(p, 12, 8, src_off, 2048 * 1024)
    else:
        srd(p, 12, 4, 0, 2048 * 1024)
    srd(p, 16, 8, WS_MOD, 3072 * 4)
    srd(p, 20, 8, dst_off, 2048 * 1024)
    p("buffer_load_dwordx4 v[4:7], v1, s[12:15], s3 offen")
    p(f"s_mov_b32 s25, {scale_idx*2048}")
    p(f"buffer_load_dwordx4 v[24:27], v2, s[16:19], s25 offen")
    p(f"buffer_load_dwordx4 v[28:31], v2, s[16:19], s25 offen offset:16")
    p(f"s_mov_b32 s24, {shift_idx*2048}")
    p(f"buffer_load_dwordx4 v[32:35], v2, s[16:19], s24 offen")
    p(f"buffer_load_dwordx4 v[36:39], v2, s[16:19], s24 offen offset:16")
    p("s_waitcnt vmcnt(4)")
    for q in range(4):
        p(f"v_lshlrev_b32 v{8+2*q}, 16, v{4+q}")
        p(f"v_and_b32 v{9+2*q}, 0xffff0000, v{4+q}")
    p("v_add_f32 v16, v8, v9")
    for j in range(2, 8):
        p(f"v_add_f32 v16, v16, v{8+j}")
    wave_reduce(p, "v_add_f32", 16, 17)
    p(f"v_mul_f32 v16, {hx(1.0/512)}, v16")
    p("v_sub_f32 v18, v8, v16")
    p("v_mul_f32 v17, v18, v18")
    for j in range(1, 8):
        p(f"v_sub_f32 v18, v{8+j}, v16")
        p("v_fmac_f32 v17, v18, v18")
    wave_reduce(p, "v_add_f32", 17, 18)
    p(f"v_mul_f32 v17, {hx(1.0/512)}, v17")
    rbf(p, 16, 16)
    rbf(p, 17, 17)
    p(f"v_add_f32 v17, {hx(1e-5)}, v17")
    rbf(p, 17, 17)
    p("v_sqrt_f32 v17, v17")
    rbf(p, 17, 17)
    p("v_rcp_f32 v18, v17")
    p("s_waitcnt vmcnt(0)")
    for j in range(0, 8, 2):
        a, b = 8 + j, 9 + j
        p(f"v_sub_f32 v{a}, v{a}, v16")
        p(f"v_sub_f32 v{b}, v{b}, v16")
        rbf2(p, a, b, a, b, 19)
        for r in (a, b):
            p(f"v_mul_f32 v20, v{r}, v18")
            p(f"v_fma_f32 v21, -v20, v17, v{r}")
            p(f"v_fma_f32 v{r}, v21, v18, v20")
        rbf2(p, a, b, a, b, 19)
        p(f"v_add_f32 v20, 1.0, v{24+j}")
        p(f"v_add_f32 v21, 1.0, v{25+j}")
        rbf2(p, 20, 21, 20, 21, 19)
        p(f"v_mul_f32 v{a}, v{a}, v20")
        p(f"v_mul_f32 v{b}, v{b}, v21")
        rbf2(p, a, b, a, b, 19)
        p(f"v_add_f32 v{a}, v{a}, v{32+j}")
        p(f"v_add_f32 v{b}, v{b}, v{33+j}")
        p(f"v_cvt_pk_bf16_f32 v{4+j//2}, v{a}, v{b}")
    p("buffer_store_dwordx4 v[4:7], v1, s[20:23], s3 offen")
    p.label(f"{name}_end")
    p("s_endpgm")
    return p


BIAS = 64.0


def gen_attn():
    p = Prog("attn")
    mimic = OPT["mimic"]
    QF = 0
    OA = 32
    SB = 96
    PB = 128
    KF = 144
    VF = 176
    KAD = 208
    VAD = 216
    KDO = 220
    VDO = 221
    NEGM = 222
    LSUM = 223
    TS0 = 224
    TS1 = 225
    T = 226
    LANE = 246
    HF = 96
    WAD = 226
    WDO = 230
    AF = 248

    p("s_cmp_ge_u32 s2, 256")
    p("s_cbranch_scc1 attn_end")
    p(f"s_load_dwordx4 s[28:31], s[0:1], {KA['k']}")
    p(f"s_load_dwordx2 s[32:33], s[0:1], {KA['wq']}")
    p(f"s_load_dwordx2 s[34:35], s[0:1], {KA['ws']}")
    p(f"v_lshrrev_b32 v{T}, 6, v0")
    p(f"v_and_b32 v{LANE}, 63, v0")
    p(f"v_readfirstlane_b32 s3, v{T}")
    p("s_and_b32 s4, s2, 7")
    p("s_lshr_b32 s5, s2, 6")
    p("s_lshl_b32 s4, s4, 2")
    p("s_add_u32 s4, s4, s5")
    p("s_lshr_b32 s5, s2, 3")
    p("s_and_b32 s5, s5, 7")
    p("s_waitcnt lgkmcnt(0)")
    p("s_lshl_b32 s6, s4, 19")
    srd(p, 8, 28, "s6", 524288)
    srd(p, 12, 30, "s6", 524288)
    p("s_lshl_b32 s6, s4, 8")
    p("s_sub_u32 s7, 0x400000, s6")
    srd(p, 16, 32, "s6", "s7")
    p("s_lshl_b32 s7, s5, 18")
    p(f"s_add_u32 s7, s7, 0x{WS_H:x}")
    srd(p, 20, 34, "s7", 262144)
    p("s_lshl_b32 s7, s5, 21")
    p("s_add_u32 s7, s7, s6")
    p(f"s_add_u32 s7, s7, 0x{WS_O:x}")
    p("s_sub_u32 s36, 0x200000, s6")
    srd(p, 24, 34, "s7", "s36")

    L = LANE
    t0, t1, t2, t3, t4, t5, t6 = T + 14, T + 15, T + 16, T + 17, T + 18, T + 19, T + 13
    p(f"v_and_b32 v{t0}, 31, v{L}")
    p(f"v_lshrrev_b32 v{t1}, 5, v{L}")
    p(f"v_bfe_u32 v{t2}, v{L}, 2, 2")
    p(f"v_bfe_u32 v{t3}, v{L}, 4, 1")
    p(f"v_and_b32 v{t4}, 3, v{L}")
    p("s_lshl_b32 s6, s3, 15")
    p(f"v_lshlrev_b32 v{t5}, 10, v{t0}")
    p(f"v_lshl_add_u32 v{t5}, v{t1}, 4, v{t5}")
    for ks in range(32):
        p(f"buffer_load_dwordx4 v[{HF+4*ks}:{HF+4*ks+3}], v{t5}, s[20:23], s6 offen offset:{32*ks}")
    p(f"v_lshrrev_b32 v{t5}, 4, v{L}")
    p(f"v_lshlrev_b32 v{t6}, 2, v{t5}")
    p(f"v_and_b32 v{WDO}, 15, v{L}")
    p(f"v_xor_b32 v{WDO}, v{WDO}, v{t6}")
    p(f"v_lshlrev_b32 v{WDO}, 4, v{WDO}")
    p(f"v_lshl_add_u32 v{T+12}, v{t5}, 8, v{WDO}")
    p(f"v_lshl_add_u32 v{WDO}, v{t5}, 13, v{WDO}")
    p("s_lshl_b32 s6, s3, 15")
    p("s_lshl_b32 s37, s3, 10")
    for j in range(8):
        for sec in range(2):
            p(f"s_add_u32 s7, s6, {(64*j+32*sec)*8192}")
            p(f"s_add_u32 m0, s37, {j*16384+sec*8192}")
            p(f"buffer_load_dwordx4 v{WDO}, s[16:19], s7 offen lds")
    p(f"v_lshl_add_u32 v{t5}, v{t1}, 3, v{t2}")
    p(f"v_lshlrev_b32 v{t5}, 8, v{t5}")
    p(f"v_and_b32 v{t6}, 1, v{t4}")
    p(f"v_lshl_add_u32 v{t6}, v{t3}, 1, v{t6}")
    p(f"v_lshl_add_u32 v{t5}, v{t6}, 4, v{t5}")
    p(f"v_lshrrev_b32 v{t6}, 1, v{t4}")
    p(f"v_lshl_add_u32 v{t5}, v{t6}, 3, v{t5}")
    for d in range(4):
        p(f"v_xor_b32 v{t6}, {d}, v{t2}")
        p(f"v_lshl_add_u32 v{WAD+d}, v{t6}, 6, v{t5}")
    for r in range(64):
        p(f"v_mov_b32 v{OA+r}, 0")
    p("s_waitcnt vmcnt(0)")
    p("s_barrier")
    n = 0
    for ks in range(32):
        if ks == 16:
            for d in range(4):
                p(f"v_add_u32 v{WAD+d}, 0x10000, v{WAD+d}")
        for d in range(4):
            af = AF + 4 * (n & 1)
            off = ((ks >> 2) & 3) * 16384 + (ks & 3) * 16 * 256
            p(f"ds_read_b64_tr_b16 v[{af}:{af+1}], v{WAD+d} offset:{off}")
            p(f"ds_read_b64_tr_b16 v[{af+2}:{af+3}], v{WAD+d} offset:{off+1024}")
            p("s_waitcnt lgkmcnt(0)")
            p(f"v_mfma_f32_32x32x16_bf16 v[{OA+16*d}:{OA+16*d+15}], v[{af}:{af+3}], v[{HF+4*ks}:{HF+4*ks+3}], v[{OA+16*d}:{OA+16*d+15}]")
            n += 1
    for d in range(4):
        for a in range(2):
            for q in range(4):
                r = OA + 16 * d + 8 * a + 2 * q
                p(f"v_cvt_pk_bf16_f32 v{QF+4*(2*d+a)+q}, v{r}, v{r+1}")
    p("s_barrier")
    p(f"v_mov_b32 v{VDO}, v{T+12}")
    p("s_and_b32 s6, s3, 3")
    p("s_lshl_b32 s6, s6, 2")
    p(f"v_lshrrev_b32 v{t5}, 4, v{L}")
    p(f"v_add_u32 v{t6}, s6, v{t5}")
    p(f"v_and_b32 v{KDO}, 15, v{L}")
    p(f"v_xor_b32 v{KDO}, v{KDO}, v{t6}")
    p(f"v_lshlrev_b32 v{KDO}, 4, v{KDO}")
    p(f"v_lshl_add_u32 v{KDO}, v{t5}, 8, v{KDO}")
    p(f"v_and_b32 v{t5}, 15, v{L}")
    p(f"v_xor_b32 v{t5}, v{t5}, v{t1}")
    p(f"v_lshlrev_b32 v{t5}, 4, v{t5}")
    p(f"v_lshl_add_u32 v{t5}, v{t0}, 8, v{t5}")
    for ks in range(8):
        p(f"v_xor_b32 v{KAD+ks}, {32*ks}, v{t5}")
    p(f"v_lshl_add_u32 v{t5}, v{t1}, 2, v{t2}")
    p(f"v_lshlrev_b32 v{t5}, 8, v{t5}")
    p(f"v_lshrrev_b32 v{t6}, 1, v{t4}")
    p(f"v_lshl_add_u32 v{t6}, v{t3}, 1, v{t6}")
    p(f"v_lshl_add_u32 v{t5}, v{t6}, 4, v{t5}")
    p(f"v_and_b32 v{t6}, 1, v{t4}")
    p(f"v_lshl_add_u32 v{t5}, v{t6}, 3, v{t5}")
    p(f"v_add_u32 v{t5}, 0x10000, v{t5}")
    for d in range(4):
        p(f"v_xor_b32 v{t6}, {d}, v{t2}")
        p(f"v_lshl_add_u32 v{VAD+d}, v{t6}, 6, v{t5}")
    for r in range(64):
        p(f"v_mov_b32 v{OA+r}, 0")
    p(f"v_mov_b32 v{LSUM}, 0")
    p(f"v_mov_b32 v{NEGM}, 0")
    p(f"s_mov_b32 s40, {hx(SCALE)}")
    p(f"s_mov_b32 s41, {hx(LOG2E)}")
    p("s_lshl_b32 s42, s3, 10")
    p("s_mov_b32 s43, s42")
    p("s_mov_b32 s44, s42")

    def dma_k(slot):
        out = []
        for sec in range(2):
            out.append(f"s_add_u32 m0, s42, {slot*16384+sec*8192}")
            if sec:
                out.append("s_add_u32 s45, s43, 8192")
                out.append(f"buffer_load_dwordx4 v{KDO}, s[8:11], s45 offen lds")
            else:
                out.append(f"buffer_load_dwordx4 v{KDO}, s[8:11], s43 offen lds")
        out.append("s_add_u32 s43, s43, 16384")
        return out

    def dma_v(slot):
        out = []
        for sec in range(2):
            out.append(f"s_add_u32 m0, s42, {65536+slot*16384+sec*8192}")
            if sec:
                out.append("s_add_u32 s45, s44, 8192")
                out.append(f"buffer_load_dwordx4 v{VDO}, s[12:15], s45 offen lds")
            else:
                out.append(f"buffer_load_dwordx4 v{VDO}, s[12:15], s44 offen lds")
        out.append("s_add_u32 s44, s44, 16384")
        return out

    def qk(slot, kb, sbuf):
        s = SB + 16 * sbuf
        for ks in range(8):
            p(f"ds_read_b128 v[{KF+4*ks}:{KF+4*ks+3}], v{KAD+ks} offset:{slot*16384+kb*8192}")
        for ks in range(8):
            p(f"s_waitcnt lgkmcnt({7-ks})")
            c = "0" if ks == 0 else f"v[{s}:{s+15}]"
            p(f"v_mfma_f32_32x32x16_bf16 v[{s}:{s+15}], v[{KF+4*ks}:{KF+4*ks+3}], v[{QF+4*ks}:{QF+4*ks+3}], {c}")

    def pv(slot, kb, pbuf):
        pb = PB + 8 * pbuf
        n = 0
        for s2 in range(2):
            for d in range(4):
                off = slot * 16384 + (kb * 32 + s2 * 16) * 256
                vf = VF + 4 * n
                p(f"ds_read_b64_tr_b16 v[{vf}:{vf+1}], v{VAD+d} offset:{off}")
                p(f"ds_read_b64_tr_b16 v[{vf+2}:{vf+3}], v{VAD+d} offset:{off+2048}")
                n += 1
        n = 0
        for s2 in range(2):
            for d in range(4):
                vf = VF + 4 * n
                p(f"s_waitcnt lgkmcnt({14-2*n})")
                p(f"v_mfma_f32_32x32x16_bf16 v[{OA+16*d}:{OA+16*d+15}], v[{vf}:{vf+3}], v[{pb+4*s2}:{pb+4*s2+3}], v[{OA+16*d}:{OA+16*d+15}]")
                n += 1

    def tvals(a, b, s0, s1):
        if mimic:
            rbf2(p, a, b, s0, s1, T + 4)
            p(f"v_mul_f32 v{a}, s40, v{a}")
            p(f"v_mul_f32 v{b}, s40, v{b}")
            rbf2(p, a, b, a, b, T + 4)
        else:
            p(f"v_mul_f32 v{a}, s40, v{s0}")
            p(f"v_mul_f32 v{b}, s40, v{s1}")

    def sm(sbuf, pbuf):
        s = SB + 16 * sbuf
        pb = PB + 8 * pbuf
        for i in range(8):
            a, b = T + 2 * (i & 1), T + 1 + 2 * (i & 1)
            tvals(a, b, s + 2 * i, s + 2 * i + 1)
            p(f"v_fma_f32 v{a}, v{a}, s41, v{NEGM}")
            p(f"v_fma_f32 v{b}, v{b}, s41, v{NEGM}")
            p(f"v_exp_f32 v{a}, v{a}")
            p(f"v_exp_f32 v{b}, v{b}")
            if i == 0:
                p(f"v_mov_b32 v{TS0}, v{a}")
                p(f"v_mov_b32 v{TS1}, v{b}")
            else:
                p(f"v_add_f32 v{TS0}, v{TS0}, v{a}")
                p(f"v_add_f32 v{TS1}, v{TS1}, v{b}")
            p(f"v_cvt_pk_bf16_f32 v{pb+i}, v{a}, v{b}")
        p(f"v_add_f32 v{TS0}, v{TS0}, v{TS1}")

    def rescale(sbuf, force):
        s = SB + 16 * sbuf
        mx = T + 6
        for i in range(8):
            a, b = T, T + 1
            tvals(a, b, s + 2 * i, s + 2 * i + 1)
            if i == 0:
                p(f"v_max_f32 v{mx}, v{a}, v{b}")
            else:
                p(f"v_max3_f32 v{mx}, v{a}, v{b}, v{mx}")
        p(f"v_mov_b32 v{T+7}, v{mx}")
        p(f"v_permlane32_swap_b32 v{mx}, v{T+7}")
        p(f"v_max_f32 v{mx}, v{mx}, v{T+7}")
        p(f"v_fma_f32 v{mx}, v{mx}, s41, v{NEGM}")
        p(f"v_add_f32 v{T+7}, {hx(BIAS)}, v{mx}")
        if not force:
            p(f"v_cmp_lt_f32 vcc, -8.0, v{mx}" if False else f"v_cmp_gt_f32 vcc, v{mx}, v{T+8}")
            p(f"v_cndmask_b32 v{T+7}, 0, v{T+7}, vcc")
        p(f"v_sub_f32 v{NEGM}, v{NEGM}, v{T+7}")
        if not force:
            p(f"v_sub_f32 v{T+7}, 0, v{T+7}")
            p(f"v_exp_f32 v{T+7}, v{T+7}")
            p("s_nop 15")
            p(f"v_mul_f32 v{LSUM}, v{LSUM}, v{T+7}")
            for r in range(64):
                p(f"v_mul_f32 v{OA+r}, v{OA+r}, v{T+7}")

    rare = []

    def check(sbuf, pbuf):
        lab = p.newlabel("rare")
        back = p.newlabel("back")
        p(f"v_cmp_le_f32 vcc, 2.0, v{TS0}")
        p(f"s_cbranch_vccnz {lab}")
        p.label(back)
        p(f"v_add_f32 v{LSUM}, v{LSUM}, v{TS0}")
        rare.append((lab, back, sbuf, pbuf))

    p(f"v_mov_b32 v{T+8}, {hx(-8.0)}")
    for t in range(3):
        for x in dma_k(t):
            p(x)
        if t < 2:
            for x in dma_v(t):
                p(x)
    p("s_waitcnt vmcnt(0)")
    p("s_barrier")
    qk(0, 0, 0)
    rescale(0, True)
    p("s_mov_b32 s46, 0")
    p.label("attn_loop")
    for tm in range(4):
        for x in dma_k((tm + 3) & 3):
            p(x)
        for x in dma_v((tm + 2) & 3):
            p(x)
        qk(tm, 1, 1)
        sm(0, 0)
        if tm == 0:
            skip = p.newlabel("skip")
            p("s_cmp_eq_u32 s46, 0")
            p(f"s_cbranch_scc1 {skip}")
            pv((tm - 1) & 3, 1, 1)
            p.label(skip)
        else:
            pv((tm - 1) & 3, 1, 1)
        check(0, 0)
        qk((tm + 1) & 3, 0, 0)
        sm(1, 1)
        pv(tm, 0, 0)
        check(1, 1)
        p("s_waitcnt vmcnt(4)")
        p("s_barrier")
    p("s_add_u32 s46, s46, 1")
    p("s_cmp_lt_u32 s46, 8")
    p("s_cbranch_scc1 attn_loop")
    pv(3, 1, 1)
    p(f"v_mov_b32 v{T}, v{LSUM}")
    p(f"v_permlane32_swap_b32 v{LSUM}, v{T}")
    p(f"v_add_f32 v{LSUM}, v{LSUM}, v{T}")
    p(f"v_rcp_f32 v{T}, v{LSUM}")
    p(f"v_and_b32 v{T+1}, 31, v{L}")
    p(f"v_lshlrev_b32 v{T+1}, 13, v{T+1}")
    p(f"v_lshrrev_b32 v{T+2}, 5, v{L}")
    p(f"v_lshl_add_u32 v{T+1}, v{T+2}, 3, v{T+1}")
    p("s_lshl_b32 s6, s3, 18")
    p("s_nop 7")
    for d in range(4):
        for g in range(4):
            r = OA + 16 * d + 4 * g
            for i in range(4):
                p(f"v_mul_f32 v{r+i}, v{r+i}, v{T}")
            p(f"v_cvt_pk_bf16_f32 v{r}, v{r}, v{r+1}")
            p(f"v_cvt_pk_bf16_f32 v{r+1}, v{r+2}, v{r+3}")
            p(f"buffer_store_dwordx2 v[{r}:{r+1}], v{T+1}, s[24:27], s6 offen offset:{64*d+16*g}")
    p.label("attn_end")
    p("s_endpgm")
    for lab, back, sbuf, pbuf in rare:
        p.label(lab)
        p("s_nop 15")
        rescale(sbuf, False)
        sm(sbuf, pbuf)
        p("s_nop 3")
        p(f"s_branch {back}")
    return p


def gen_gemm64(name, K, x_off, wkey, mode):
    p = Prog(name)
    NST = K // 128
    ACC = 0
    XF = 64
    WF = 72
    XAD = 80
    WAD = 82
    XDO = 84
    WDO = 85
    T = 86
    L = 110
    p("s_cmp_ge_u32 s2, 256")
    p(f"s_cbranch_scc1 {name}_end")
    p(f"s_load_dwordx2 s[28:29], s[0:1], {KA[wkey]}")
    p(f"s_load_dwordx2 s[30:31], s[0:1], {KA['x']}")
    p(f"s_load_dwordx2 s[32:33], s[0:1], {KA['out']}")
    p(f"s_load_dwordx2 s[34:35], s[0:1], {KA['ws']}")
    p(f"v_lshrrev_b32 v{T}, 6, v0")
    p(f"v_and_b32 v{L}, 63, v0")
    p(f"v_readfirstlane_b32 s3, v{T}")
    p("s_and_b32 s4, s2, 7")
    p("s_lshl_b32 s4, s4, 2")
    p("s_lshr_b32 s5, s2, 6")
    p("s_add_u32 s4, s4, s5")
    p("s_lshr_b32 s5, s2, 3")
    p("s_and_b32 s5, s5, 7")
    p("s_waitcnt lgkmcnt(0)")
    p(f"s_mul_i32 s6, s4, {64*K*2}")
    p(f"s_add_u32 s6, s6, 0x{x_off:x}")
    srd(p, 8, 34, "s6", 64 * K * 2)
    p("s_lshl_b32 s6, s5, 7")
    p(f"s_sub_u32 s7, {K*1024}, s6")
    srd(p, 12, 28, "s6", "s7")
    srd(p, 16, 34, WS_MOD, 3072 * 4)
    p("s_lshl_b32 s36, s4, 16")
    p("s_add_u32 s36, s36, s6")
    p("s_sub_u32 s7, 0x10000, s6")
    if mode == "oproj":
        srd(p, 20, 30, "s36", "s7")
        p(f"s_add_u32 s36, s36, 0x{WS_X1:x}")
        srd(p, 24, 34, "s36", "s7")
    else:
        srd(p, 24, 32, "s36", "s7")
        p(f"s_add_u32 s36, s36, 0x{WS_X1:x}")
        srd(p, 20, 34, "s36", "s7")
    t0, t1, t2, t3, t4, t5, t6 = T, T + 1, T + 2, T + 3, T + 4, T + 5, T + 6
    p(f"v_and_b32 v{t0}, 31, v{L}")
    p(f"v_lshrrev_b32 v{t1}, 5, v{L}")
    p(f"v_bfe_u32 v{t2}, v{L}, 2, 2")
    p(f"v_bfe_u32 v{t3}, v{L}, 4, 1")
    p(f"v_and_b32 v{t4}, 3, v{L}")
    p("s_lshl_b32 s6, s3, 2")
    p(f"v_lshrrev_b32 v{t5}, 4, v{L}")
    p(f"v_add_u32 v{t5}, s6, v{t5}")
    p(f"v_and_b32 v{XDO}, 15, v{L}")
    p(f"v_xor_b32 v{XDO}, v{XDO}, v{t5}")
    p(f"v_lshlrev_b32 v{XDO}, 4, v{XDO}")
    p(f"v_mul_u32_u24 v{t5}, {K*2}, v{t5}")
    p(f"v_add_u32 v{XDO}, v{XDO}, v{t5}")
    p("s_lshl_b32 s6, s3, 3")
    p(f"v_lshrrev_b32 v{t5}, 3, v{L}")
    p(f"v_bfe_u32 v{t6}, v{L}, 4, 1")
    p(f"v_lshlrev_b32 v{t6}, 2, v{t6}")
    p(f"v_and_b32 v{WDO}, 7, v{L}")
    p(f"v_xor_b32 v{WDO}, v{WDO}, v{t6}")
    p(f"v_lshlrev_b32 v{WDO}, 4, v{WDO}")
    p(f"v_add_u32 v{t5}, s6, v{t5}")
    p(f"v_lshl_add_u32 v{WDO}, v{t5}, 10, v{WDO}")
    p(f"v_and_b32 v{t5}, 15, v{L}")
    p(f"v_xor_b32 v{t5}, v{t5}, v{t1}")
    p(f"v_lshlrev_b32 v{t5}, 4, v{t5}")
    p(f"v_lshl_add_u32 v{t5}, v{t0}, 8, v{t5}")
    p("s_lshl_b32 s6, s3, 6")
    p(f"v_xor_b32 v{XAD}, s6, v{t5}")
    p(f"v_xor_b32 v{XAD+1}, 32, v{XAD}")
    p(f"v_lshl_add_u32 v{t5}, v{t1}, 3, v{t2}")
    p("s_lshl_b32 s6, s3, 5")
    p(f"v_add_u32 v{t5}, s6, v{t5}")
    p(f"v_lshlrev_b32 v{t5}, 7, v{t5}")
    p(f"v_add_u32 v{t5}, 0x10000, v{t5}")
    p(f"v_and_b32 v{t6}, 1, v{t4}")
    p(f"v_lshl_add_u32 v{t5}, v{t6}, 3, v{t5}")
    p(f"v_lshrrev_b32 v{t6}, 1, v{t4}")
    p(f"v_lshl_add_u32 v{t6}, v{t3}, 1, v{t6}")
    p(f"v_lshrrev_b32 v{T+7}, 1, v{t2}")
    p(f"v_lshl_add_u32 v{t6}, v{T+7}, 2, v{t6}")
    p(f"v_lshl_add_u32 v{WAD}, v{t6}, 4, v{t5}")
    p(f"v_xor_b32 v{t6}, 4, v{t6}")
    p(f"v_lshl_add_u32 v{WAD+1}, v{t6}, 4, v{t5}")
    for r in range(64):
        p(f"v_mov_b32 v{ACC+r}, 0")
    p("s_lshl_b32 s42, s3, 10")
    p("s_mov_b32 s43, 0")
    p("s_mov_b32 s44, 0")

    def dma(slot):
        for j in range(4):
            p(f"s_add_u32 m0, s42, {slot*16384+j*4096}")
            p(f"s_add_u32 s45, s43, {16*j*K*2}")
            p(f"buffer_load_dwordx4 v{XDO}, s[8:11], s45 offen lds")
        for j in range(4):
            p(f"s_add_u32 m0, s42, {65536+slot*16384+j*4096}")
            p(f"s_add_u32 s45, s44, {32*j*1024}")
            p(f"buffer_load_dwordx4 v{WDO}, s[12:15], s45 offen lds")
        p("s_add_u32 s43, s43, 256")
        p(f"s_add_u32 s44, s44, {128*1024}")

    for s in range(3):
        dma(s)
    nfull = NST // 4
    rem = NST % 4

    def stage(slot):
        p("s_waitcnt vmcnt(16)")
        p("s_barrier")
        dma((slot + 3) & 3)
        for j in range(2):
            for mb in range(2):
                p(f"ds_read_b128 v[{XF+4*mb}:{XF+4*mb+3}], v{XAD+j} offset:{slot*16384+mb*8192}")
            for nb in range(2):
                off = slot * 16384 + j * 16 * 128
                p(f"ds_read_b64_tr_b16 v[{WF+4*nb}:{WF+4*nb+1}], v{WAD+nb} offset:{off}")
                p(f"ds_read_b64_tr_b16 v[{WF+4*nb+2}:{WF+4*nb+3}], v{WAD+nb} offset:{off+512}")
            p("s_waitcnt lgkmcnt(0)")
            for nb in range(2):
                for mb in range(2):
                    a = ACC + 16 * (2 * nb + mb)
                    p(f"v_mfma_f32_32x32x16_bf16 v[{a}:{a+15}], v[{WF+4*nb}:{WF+4*nb+3}], v[{XF+4*mb}:{XF+4*mb+3}], v[{a}:{a+15}]")

    p("s_mov_b32 s46, 0")
    p.label(f"{name}_loop")
    for s in range(4):
        stage(s)
    p("s_add_u32 s46, s46, 1")
    p(f"s_cmp_lt_u32 s46, {nfull}")
    p(f"s_cbranch_scc1 {name}_loop")
    for s in range(rem):
        stage(s)
    p("s_waitcnt vmcnt(0)")
    p("s_barrier")
    p(f"v_lshlrev_b32 v{t5}, 4, v{L}")
    p("s_lshl_b32 s6, s3, 14")
    p(f"v_add_u32 v{t6}, s6, v{t5}")
    for b in range(4):
        for rq in range(4):
            a = ACC + 16 * b + 4 * rq
            p(f"ds_write_b128 v{t6}, v[{a}:{a+3}] offset:{(b*4+rq)*1024}")
    p("s_waitcnt lgkmcnt(0)")
    p("s_barrier")
    p("s_lshl_b32 s6, s3, 12")
    p(f"v_add_u32 v{t6}, s6, v{t5}")
    for sw in range(4):
        for rq in range(4):
            a = ACC + 16 * sw + 4 * rq
            p(f"ds_read_b128 v[{a}:{a+3}], v{t6} offset:{sw*16384+rq*1024}")
    p("s_lshr_b32 s6, s3, 1")
    p("s_and_b32 s7, s3, 1")
    p(f"v_lshlrev_b32 v{t5}, 10, v{t0}")
    p(f"v_lshl_add_u32 v{t5}, v{t1}, 3, v{t5}")
    p("s_lshl_b32 s38, s7, 15")
    p("s_lshl_b32 s39, s6, 6")
    p("s_add_u32 s38, s38, s39")
    for g in range(4):
        p(f"buffer_load_dwordx2 v[{XF+2*g}:{XF+2*g+1}], v{t5}, s[20:23], s38 offen offset:{16*g}")
    gidx = 2 if mode == "oproj" else 5
    p(f"v_lshlrev_b32 v{t6}, 4, v{t1}")
    p("s_lshl_b32 s39, s5, 8")
    p("s_lshl_b32 s40, s6, 7")
    p("s_add_u32 s39, s39, s40")
    p(f"s_add_u32 s39, s39, {gidx*2048}")
    GV = 112
    for g in range(4):
        p(f"buffer_load_dwordx4 v[{GV+4*g}:{GV+4*g+3}], v{t6}, s[16:19], s39 offen offset:{32*g}")
    p("s_waitcnt lgkmcnt(0)")
    for r in range(16):
        p(f"v_add_f32 v{ACC+r}, v{ACC+r}, v{ACC+16+r}")
        p(f"v_add_f32 v{ACC+32+r}, v{ACC+32+r}, v{ACC+48+r}")
        p(f"v_add_f32 v{ACC+r}, v{ACC+r}, v{ACC+32+r}")
    p("s_waitcnt vmcnt(0)")
    for g in range(4):
        for h2 in range(2):
            a, b = ACC + 4 * g + 2 * h2, ACC + 4 * g + 2 * h2 + 1
            rbf2(p, a, b, a, b, T + 7)
            p(f"v_mul_f32 v{a}, v{a}, v{GV+4*g+2*h2}")
            p(f"v_mul_f32 v{b}, v{b}, v{GV+4*g+2*h2+1}")
            rbf2(p, a, b, a, b, T + 7)
            xr = XF + 2 * g + h2
            p(f"v_lshlrev_b32 v{T+8}, 16, v{xr}")
            p(f"v_and_b32 v{T+9}, 0xffff0000, v{xr}")
            p(f"v_add_f32 v{a}, v{a}, v{T+8}")
            p(f"v_add_f32 v{b}, v{b}, v{T+9}")
            p(f"v_cvt_pk_bf16_f32 v{ACC+16+2*g+h2}, v{a}, v{b}")
        p(f"buffer_store_dwordx2 v[{ACC+16+2*g}:{ACC+17+2*g}], v{t5}, s[24:27], s38 offen offset:{16*g}")
    p.label(f"{name}_end")
    p("s_endpgm")
    return p


def gen_ffn1():
    name = "ffn1"
    p = Prog(name)
    ACC = 0
    XF = 64
    WF = 72
    XAD = 80
    WAD = 84
    XDO = 86
    WDO = 87
    T = 88
    L = 110
    F = 1792
    p("s_cmp_ge_u32 s2, 224")
    p(f"s_cbranch_scc1 {name}_end")
    p(f"s_load_dwordx4 s[28:31], s[0:1], {KA['wg']}")
    p(f"s_load_dwordx2 s[34:35], s[0:1], {KA['ws']}")
    p(f"v_lshrrev_b32 v{T}, 6, v0")
    p(f"v_and_b32 v{L}, 63, v0")
    p(f"v_readfirstlane_b32 s3, v{T}")
    p("s_and_b32 s4, s2, 7")
    p("s_lshl_b32 s4, s4, 1")
    p("s_lshr_b32 s5, s2, 3")
    p("s_and_b32 s6, s5, 1")
    p("s_add_u32 s4, s4, s6")
    p("s_lshr_b32 s5, s5, 1")
    p("s_waitcnt lgkmcnt(0)")
    p("s_lshl_b32 s6, s4, 17")
    p(f"s_add_u32 s6, s6, 0x{WS_H2:x}")
    srd(p, 8, 34, "s6", 128 * 1024)
    p("s_lshl_b32 s6, s5, 8")
    p(f"s_sub_u32 s7, {512*F*2}, s6")
    srd(p, 12, 28, "s6", "s7")
    srd(p, 16, 30, "s6", "s7")
    p(f"s_mul_i32 s36, s4, {128*F*2}")
    p("s_add_u32 s36, s36, s6")
    p(f"s_add_u32 s36, s36, 0x{WS_G:x}")
    p(f"s_sub_u32 s7, {128*F*2}, s6")
    srd(p, 24, 34, "s36", "s7")
    t0, t1, t2, t3, t4, t5, t6 = T, T + 1, T + 2, T + 3, T + 4, T + 5, T + 6
    p(f"v_and_b32 v{t0}, 31, v{L}")
    p(f"v_lshrrev_b32 v{t1}, 5, v{L}")
    p(f"v_bfe_u32 v{t2}, v{L}, 2, 2")
    p(f"v_bfe_u32 v{t3}, v{L}, 4, 1")
    p(f"v_and_b32 v{t4}, 3, v{L}")
    p("s_lshl_b32 s6, s3, 3")
    p(f"v_lshrrev_b32 v{t5}, 3, v{L}")
    p(f"v_add_u32 v{t5}, s6, v{t5}")
    p(f"v_bfe_u32 v{t6}, v{t5}, 1, 3")
    p(f"v_and_b32 v{XDO}, 7, v{L}")
    p(f"v_xor_b32 v{XDO}, v{XDO}, v{t6}")
    p(f"v_lshlrev_b32 v{XDO}, 4, v{XDO}")
    p(f"v_lshl_add_u32 v{XDO}, v{t5}, 10, v{XDO}")
    p("s_lshl_b32 s6, s3, 2")
    p(f"v_lshrrev_b32 v{t5}, 4, v{L}")
    p(f"v_lshlrev_b32 v{t6}, 2, v{t5}")
    p(f"v_and_b32 v{WDO}, 15, v{L}")
    p(f"v_xor_b32 v{WDO}, v{WDO}, v{t6}")
    p(f"v_lshlrev_b32 v{WDO}, 4, v{WDO}")
    p(f"v_add_u32 v{t5}, s6, v{t5}")
    p(f"v_mul_u32_u24 v{t5}, {F*2}, v{t5}")
    p(f"v_add_u32 v{WDO}, v{WDO}, v{t5}")
    p("s_and_b32 s6, s3, 1")
    p("s_lshl_b32 s6, s6, 13")
    p(f"v_bfe_u32 v{t5}, v{L}, 1, 3")
    p(f"v_xor_b32 v{t5}, v{t5}, v{t1}")
    p(f"v_lshlrev_b32 v{t5}, 4, v{t5}")
    p(f"v_lshl_add_u32 v{t5}, v{t0}, 7, v{t5}")
    p(f"v_add_u32 v{t5}, s6, v{t5}")
    for j in range(4):
        p(f"v_xor_b32 v{XAD+j}, {32*j}, v{t5}")
    p(f"v_lshl_add_u32 v{t5}, v{t1}, 3, v{t2}")
    p(f"v_lshlrev_b32 v{t5}, 8, v{t5}")
    p(f"v_add_u32 v{t5}, 49152, v{t5}")
    p(f"v_lshrrev_b32 v{t6}, 1, v{t4}")
    p(f"v_lshl_add_u32 v{t6}, v{t3}, 1, v{t6}")
    p(f"v_lshl_add_u32 v{t5}, v{t6}, 4, v{t5}")
    p(f"v_and_b32 v{t6}, 1, v{t4}")
    p(f"v_lshl_add_u32 v{t5}, v{t6}, 3, v{t5}")
    p("s_lshr_b32 s6, s3, 1")
    p(f"v_xor_b32 v{t6}, s6, v{t2}")
    p(f"v_lshl_add_u32 v{WAD}, v{t6}, 6, v{t5}")
    p(f"v_add_u32 v{WAD+1}, 49152, v{WAD}")
    for r in range(64):
        p(f"v_mov_b32 v{ACC+r}, 0")
    p("s_lshl_b32 s42, s3, 10")
    SL = 16384

    def dma(st):
        slot = st % 3
        for j in range(2):
            p(f"s_add_u32 m0, s42, {slot*SL+j*8192}")
            p(f"s_mov_b32 s45, {64*j*1024+st*128}")
            p(f"buffer_load_dwordx4 v{XDO}, s[8:11], s45 offen lds")
        for gu in range(2):
            for j in range(2):
                p(f"s_add_u32 m0, s42, {slot*SL+49152+gu*49152+j*8192}")
                p(f"s_mov_b32 s45, {(64*st+32*j)*F*2}")
                p(f"buffer_load_dwordx4 v{WDO}, s[{12+4*gu}:{15+4*gu}], s45 offen lds")

    dma(0)
    dma(1)
    for st in range(8):
        slot = st % 3
        p(f"s_waitcnt vmcnt({6 if st < 7 else 0})")
        p("s_barrier")
        if st + 2 < 8:
            dma(st + 2)
        for j in range(4):
            for mb in range(2):
                p(f"ds_read_b128 v[{XF+4*mb}:{XF+4*mb+3}], v{XAD+j} offset:{slot*SL+mb*4096}")
            for gu in range(2):
                off = slot * SL + j * 16 * 256
                p(f"ds_read_b64_tr_b16 v[{WF+4*gu}:{WF+4*gu+1}], v{WAD+gu} offset:{off}")
                p(f"ds_read_b64_tr_b16 v[{WF+4*gu+2}:{WF+4*gu+3}], v{WAD+gu} offset:{off+1024}")
            p("s_waitcnt lgkmcnt(0)")
            for gu in range(2):
                for mb in range(2):
                    a = ACC + 16 * (2 * gu + mb)
                    p(f"v_mfma_f32_32x32x16_bf16 v[{a}:{a+15}], v[{WF+4*gu}:{WF+4*gu+3}], v[{XF+4*mb}:{XF+4*mb+3}], v[{a}:{a+15}]")
    p(f"v_mul_u32_u24 v{t5}, {F*2}, v{t0}")
    p(f"v_lshl_add_u32 v{t5}, v{t1}, 3, v{t5}")
    p("s_and_b32 s6, s3, 1")
    p(f"s_mul_i32 s38, s6, {64*F*2}")
    p("s_lshr_b32 s6, s3, 1")
    p("s_lshl_b32 s6, s6, 6")
    p("s_add_u32 s38, s38, s6")
    p(f"s_add_u32 s39, s38, {32*F*2}")
    K0 = 0.7978845608028654
    p(f"s_mov_b32 s40, {hx(0.044715)}")
    p(f"s_mov_b32 s41, {hx(-2.0*K0*LOG2E)}")
    X0, X1r, U0, U1, TT = T + 7, T + 8, T + 9, T + 10, T + 11
    for mb in range(2):
        for g in range(4):
            for h2 in range(2):
                ga_, gb_ = ACC + 16 * mb + 4 * g + 2 * h2, ACC + 16 * mb + 4 * g + 2 * h2 + 1
                ua, ub = ga_ + 32, gb_ + 32
                rbf2(p, X0, X1r, ga_, gb_, TT)
                rbf2(p, U0, U1, ua, ub, TT)
                for x in (X0, X1r):
                    p(f"v_mul_f32 v{TT}, v{x}, v{x}")
                    p(f"v_mul_f32 v{TT}, v{TT}, v{x}")
                    p(f"v_fma_f32 v{TT}, v{TT}, s40, v{x}")
                    p(f"v_mul_f32 v{TT}, s41, v{TT}")
                    p(f"v_exp_f32 v{TT}, v{TT}")
                    p(f"v_add_f32 v{TT}, 1.0, v{TT}")
                    p(f"v_rcp_f32 v{TT}, v{TT}")
                    p(f"v_mul_f32 v{x}, v{x}, v{TT}")
                rbf2(p, X0, X1r, X0, X1r, TT)
                p(f"v_mul_f32 v{X0}, v{X0}, v{U0}")
                p(f"v_mul_f32 v{X1r}, v{X1r}, v{U1}")
                p(f"v_cvt_pk_bf16_f32 v{XF+2*(g&1)+h2}, v{X0}, v{X1r}")
            p(f"buffer_store_dwordx2 v[{XF+2*(g&1)}:{XF+2*(g&1)+1}], v{t5}, s[24:27], s{38+mb} offen offset:{16*g}")
    p.label(f"{name}_end")
    p("s_endpgm")
    return p


def build(outpath):
    kernels = [
        ("mod_kernel", gen_mod(), 96, 256, 9216),
        ("ln1_kernel", gen_ln("ln1", False, 0, WS_H, 0, 1), 512, 256, 0),
        ("attn_kernel", gen_attn(), 256, 512, 131072),
        ("oproj_kernel", gen_gemm64("oproj", 4096, WS_O, "wo", "oproj"), 256, 256, 131072),
        ("ln2_kernel", gen_ln("ln2", True, WS_X1, WS_H2, 3, 4), 512, 256, 0),
        ("ffn1_kernel", gen_ffn1(), 224, 512, 147456),
        ("down_kernel", gen_gemm64("down", 1792, WS_G, "wd", "down"), 256, 256, 131072),
    ]
    head = "; generated by gen/gen.py -- adaLN + cached MHA + GEGLU FFN, launch list\n"
    for name, prog, grid, block, lds in kernels:
        head += f"; @launch kernel={name} grid=({grid},1,1) block=({block},1,1) lds={lds}\n"
    text = head + '.amdgcn_target "amdgcn-amd-amdhsa--gfx950"\n.text\n'
    descs = '.section .rodata,"a"\n'
    for name, prog, grid, block, lds in kernels:
        prog.fix(verbose=True)
        body, desc, info = kernel_text(name, prog)
        print(name, "v,a,s,nfv =", info)
        text += body
        descs += desc
    open(outpath, "w").write(text + descs)


if __name__ == "__main__":
    out = f"cdna_kernels/{NAME}.s"
    for a in sys.argv[1:]:
        if a.startswith("-o"):
            out = a[2:]
        elif "=" in a:
            k, v = a.split("=")
            OPT[k] = eval(v)
    build(out)
```

```python
import re

TRANS = ("v_exp_f32", "v_log_f32", "v_rcp_f32", "v_rsq_f32", "v_sqrt_f32", "v_sin_f32", "v_cos_f32",
         "v_rcp_iflag_f32")

_reg_re = re.compile(r"^(-|\|)?(abs\()?([vas])(\d+|\[(\d+):(\d+)\])\)?\|?$")


def regs_of(tok):
    tok = tok.strip()
    if tok in ("vcc",):
        return ["vcc_lo", "vcc_hi"]
    if tok in ("vcc_lo", "vcc_hi", "m0"):
        return [tok]
    if tok in ("exec",):
        return ["exec_lo", "exec_hi"]
    if tok in ("exec_lo", "exec_hi"):
        return [tok]
    m = _reg_re.match(tok)
    if not m:
        return []
    k = m.group(3)
    if m.group(5) is not None:
        return [f"{k}{i}" for i in range(int(m.group(5)), int(m.group(6)) + 1)]
    return [f"{k}{m.group(4)}"]


class Inst:
    __slots__ = ("text", "op", "dst", "src", "kind", "passes", "srcc", "srcab", "ws", "target", "wide_store",
                 "lds_dma", "is_load", "dpp", "comment")

    def __init__(self, text):
        self.comment = ""
        if ";" in text:
            text, self.comment = text.split(";", 1)
        text = text.strip()
        self.text = text
        parts = text.split(None, 1)
        op = parts[0]
        self.op = op
        rest = parts[1] if len(parts) > 1 else ""
        ops = [o.strip() for o in rest.split(",")] if rest else []
        mods = ""
        if ops:
            last = ops[-1].split(None, 1)
            ops[-1] = last[0]
            if len(last) > 1:
                mods = last[1]
        self.dst = set()
        self.src = set()
        self.srcc = []
        self.srcab = set()
        self.passes = 0
        self.ws = 1
        self.target = None
        self.wide_store = None
        self.lds_dma = False
        self.is_load = False
        self.dpp = ("row_" in mods or "quad_perm" in mods or "wave_" in mods)
        base = op.replace("_e32", "").replace("_e64", "")
        R = [regs_of(o) for o in ops]
        if op.startswith("v_mfma"):
            self.kind = "mfma"
            self.passes = 8 if "32x32" in op else 4
            self.dst = set(R[0])
            self.srcab = set(R[1] + R[2])
            self.srcc = R[3]
            self.src = self.srcab | set(R[3])
        elif op.startswith("v_"):
            self.kind = "trans" if base in TRANS else "valu"
            if base.startswith("v_cmp"):
                self.dst = set(R[0])
                for r in R[1:]:
                    self.src |= set(r)
            elif base.startswith("v_permlane") and "swap" in base:
                self.dst = set(R[0] + R[1])
                self.src = set(R[0] + R[1])
            elif base in ("v_add_co_u32", "v_sub_co_u32", "v_addc_co_u32", "v_subb_co_u32", "v_div_scale_f32",
                          "v_mad_u64_u32"):
                self.dst = set(R[0] + R[1])
                for r in R[2:]:
                    self.src |= set(r)
            else:
                self.dst = set(R[0])
                for r in R[1:]:
                    self.src |= set(r)
                if base in ("v_fmac_f32", "v_pk_fmac_f16", "v_dot2c_f32_bf16", "v_writelane_b32"):
                    self.src |= set(R[0])
                if base == "v_cndmask_b32" and len(ops) == 3:
                    self.src |= {"vcc_lo", "vcc_hi"}
                if base == "v_div_fmas_f32":
                    self.src |= {"vcc_lo", "vcc_hi"}
        elif op.startswith("buffer_") or op.startswith("global_"):
            self.kind = "vmem"
            allm = " ".join([mods] + ops)
            mo = re.search(r"offset:(-?\d+)", mods)
            if mo:
                assert 0 <= int(mo.group(1)) < 4096, "vmem offset out of range: " + text
            if "load" in op and (re.search(r"\blds\b", allm) or "_lds_" in op):
                self.lds_dma = True
                for r in R:
                    self.src |= set(r)
                self.src.add("m0")
            elif "load" in op:
                self.is_load = True
                self.dst = set(R[0])
                for r in R[1:]:
                    self.src |= set(r)
            elif "atomic" in op:
                for r in R:
                    self.src |= set(r)
                if "sc0" in mods:
                    self.is_load = True
                    self.dst = set(R[0])
            elif "store" in op:
                for r in R:
                    self.src |= set(r)
                if "x4" in op or "x3" in op:
                    self.wide_store = set(R[0] if op.startswith("buffer_") else R[1])
            else:
                pass
        elif op.startswith("ds_"):
            self.kind = "ds"
            if "read" in op or "permute" in op or "swizzle" in op:
                self.is_load = True
                self.dst = set(R[0])
                for r in R[1:]:
                    self.src |= set(r)
            else:
                for r in R:
                    self.src |= set(r)
        elif op.startswith("s_load") or op.startswith("s_buffer_load") or op.startswith("s_mem"):
            self.kind = "smem"
            self.is_load = True
            self.dst = set(R[0])
            for r in R[1:]:
                self.src |= set(r)
        elif op == "s_nop":
            self.kind = "nop"
            self.ws = int(ops[0], 0) + 1
        elif op == "s_waitcnt":
            self.kind = "wait"
        elif op in ("s_barrier", "s_endpgm", "s_setprio", "s_sleep", "s_sendmsg"):
            self.kind = "misc"
        elif op.startswith("s_cbranch") or op == "s_branch":
            self.kind = "branch"
            self.target = ops[0]
            if "vcc" in op:
                self.src = {"vcc_lo", "vcc_hi"}
            if "scc" in op:
                self.src = {"scc"}
            if "exec" in op:
                self.src = {"exec_lo", "exec_hi"}
        elif op.startswith("s_"):
            self.kind = "salu"
            if op.startswith("s_cmp") or op.startswith("s_bitcmp"):
                for r in R:
                    self.src |= set(r)
                self.dst = {"scc"}
            else:
                self.dst = set(R[0]) if R else set()
                for r in R[1:]:
                    self.src |= set(r)
                if "saveexec" in op:
                    self.dst |= {"exec_lo", "exec_hi"}
                    self.src |= {"exec_lo", "exec_hi"}
                if op in ("s_addk_i32", "s_mulk_i32"):
                    self.src |= set(R[0])
        else:
            raise ValueError("unknown instruction: " + text)

    def waits(self):
        vm = re.search(r"vmcnt\((\d+)\)", self.text)
        lg = re.search(r"lgkmcnt\((\d+)\)", self.text)
        return (int(vm.group(1)) if vm else None, int(lg.group(1)) if lg else None)


class Label:
    def __init__(self, name):
        self.name = name


class Raw:
    def __init__(self, text):
        self.text = text


class Prog:
    def __init__(self, name="k"):
        self.items = []
        self.name = name
        self.uid = 0

    def I(self, text):
        for line in text.strip().split("\n"):
            line = line.strip()
            if not line:
                continue
            if line.startswith(";"):
                self.items.append(Raw("    " + line))
                continue
            self.items.append(Inst(line))

    __call__ = I

    def label(self, name):
        self.items.append(Label(name))

    def raw(self, text):
        self.items.append(Raw(text))

    def newlabel(self, base="L"):
        self.uid += 1
        return f"{self.name}_{base}{self.uid}"

    def fix(self, verbose=False, check_waits=True, auto_waits=True):
        items = self.items
        labels = {}

        def index_labels():
            labels.clear()
            for i, it in enumerate(items):
                if isinstance(it, Label):
                    labels[it.name] = i

        index_labels()
        t = 0
        lastw = {}
        lastc = {}
        lastst = {}
        vmq = []
        lgq = []
        taken = set()
        i = 0
        nins = 0
        nwaits = 0
        errors = []
        while i < len(items):
            it = items[i]
            if not isinstance(it, Inst):
                i += 1
                continue
            need = 0

            def req(tw, n):
                nonlocal need
                d = n - (t - tw - 1)
                if d > need:
                    need = d

            k = it.kind
            isvalu = k in ("valu", "trans")
            for r in it.src | it.dst:
                if r not in lastw:
                    continue
                tw, wk, wp, winst = lastw[r]
                isread = r in it.src
                if wk == "mfma":
                    if k == "mfma":
                        if r in it.srcab:
                            req(tw, 12 if wp == 8 else 8)
                        elif r in it.srcc:
                            if set(it.srcc) == winst.dst and it.passes == wp:
                                pass
                            else:
                                req(tw, 10 if wp == 8 else 6)
                        elif r in it.dst:
                            req(tw, 10 if wp == 8 else 6)
                    elif isvalu or k in ("vmem", "ds"):
                        req(tw, 12 if wp == 8 else 8)
                elif wk in ("valu", "trans"):
                    if r[0] in "va" and r[:3] != "vcc":
                        if not isread:
                            continue
                        if k == "mfma":
                            req(tw, 2)
                        elif isvalu:
                            if wk == "trans" and k != "trans":
                                req(tw, 1)
                            if it.op.startswith("v_readlane") or it.op.startswith("v_readfirstlane"):
                                req(tw, 1)
                            if it.op.startswith("v_permlane"):
                                req(tw, 2)
                            if it.dpp:
                                req(tw, 2)
                        elif k in ("vmem", "ds") and wk == "trans":
                            req(tw, 1)
                    else:
                        if not isread:
                            continue
                        if k == "vmem":
                            req(tw, 5)
                        elif isvalu:
                            if it.op.startswith("v_readlane") or it.op.startswith("v_writelane"):
                                req(tw, 4)
                            elif it.op.startswith("v_div_fmas"):
                                req(tw, 4)
                            else:
                                req(tw, 2)
                        elif k in ("salu", "branch", "smem"):
                            req(tw, 1)
                elif wk == "salu":
                    if r == "m0" and it.lds_dma:
                        req(tw, 1)
                    if r.startswith("exec") and False:
                        pass
            if isvalu:
                for r in it.dst:
                    if r in lastc:
                        tc, pc = lastc[r]
                        req(tc, 7 if pc == 8 else 3)
                    if r in lastst:
                        req(lastst[r], 2)
            elif it.is_load or k == "mfma":
                for r in it.dst:
                    if r in lastst:
                        req(lastst[r], 1)
            if need > 0:
                nop = Inst(f"s_nop {need - 1}")
                items.insert(i, nop)
                index_labels()
                nins += 1
                continue
            if check_waits:
                touched = it.src | it.dst
                ins = None
                for q, nm in ((vmq, "vmcnt"), (lgq, "lgkmcnt")):
                    hit = -1
                    for qi, (d, txt) in enumerate(q):
                        if d & touched:
                            hit = qi
                    if hit >= 0:
                        if not auto_waits:
                            errors.append(f"[{self.name}] pending {nm} load '{q[hit][1]}' touched by '{it.text}' (item {i})")
                        else:
                            n = len(q) - hit - 1
                            if nm == "lgkmcnt" and any(txt.startswith("s_") for _, txt in q):
                                n = 0
                            n = min(n, 63 if nm == "vmcnt" else 15)
                            ins = f"s_waitcnt {nm}({n})"
                            break
                if ins:
                    items.insert(i, Inst(ins))
                    index_labels()
                    nwaits += 1
                    continue
                if k == "wait":
                    vm, lg = it.waits()
                    if vm is not None:
                        while len(vmq) > vm:
                            vmq.pop(0)
                    if lg is not None:
                        if lg == 0:
                            lgq.clear()
                        else:
                            if any(txt.startswith("s_") for _, txt in lgq):
                                pass
                            else:
                                while len(lgq) > lg:
                                    lgq.pop(0)
                if k == "vmem":
                    vmq.append((set(it.dst) if it.is_load else set(), it.text))
                elif k in ("ds", "smem"):
                    lgq.append((set(it.dst) if it.is_load else set(), it.text))
            for r in it.dst:
                lastw[r] = (t, k, it.passes, it)
            if k == "mfma":
                for r in it.srcc:
                    lastc[r] = (t, it.passes)
            if it.wide_store:
                for r in it.wide_store:
                    lastst[r] = t
            t += it.ws
            if k == "branch" and it.target in labels and labels[it.target] < i and id(it) not in taken:
                taken.add(id(it))
                i = labels[it.target]
                continue
            if it.op == "s_endpgm" or it.op == "s_branch":
                vmq.clear()
                lgq.clear()
            i += 1
        if errors:
            seen = []
            for e in errors:
                if e not in seen:
                    seen.append(e)
            raise RuntimeError("\n".join(seen[:30]))
        if verbose:
            print(f"{self.name}: inserted {nins} nops, {nwaits} waits; {sum(isinstance(x, Inst) for x in items)} instructions")

    def text(self):
        out = []
        for it in self.items:
            if isinstance(it, Inst):
                out.append("    " + it.text + (("    ;" + it.comment) if it.comment else ""))
            elif isinstance(it, Label):
                out.append(it.name + ":")
            else:
                out.append(it.text)
        return "\n".join(out) + "\n"

    def max_regs(self):
        mv = ma = ms = -1
        for it in self.items:
            if isinstance(it, Inst):
                for r in it.src | it.dst:
                    if r[0] == "v" and r[1:].isdigit():
                        mv = max(mv, int(r[1:]))
                    elif r[0] == "a" and r[1:].isdigit():
                        ma = max(ma, int(r[1:]))
                    elif r[0] == "s" and r[1:].isdigit():
                        ms = max(ms, int(r[1:]))
        return mv + 1, ma + 1, ms + 1


def kernel_text(name, prog, acc_at=None):
    nv, na, ns = prog.max_regs()
    nv = max(nv, 1)
    acc = (nv + 3) // 4 * 4
    if acc_at is not None:
        assert acc_at >= acc
        acc = acc_at
    nfv = acc + na if na else nv
    if na == 0:
        acc = (nv + 3) // 4 * 4
    body = f""".globl {name}
.p2align 8
.type {name},@function
{name}:
{prog.text()}"""
    desc = f""".p2align 6
.amdhsa_kernel {name}
  .amdhsa_next_free_vgpr {nfv}
  .amdhsa_next_free_sgpr {max(ns, 8)}
  .amdhsa_accum_offset {acc}
  .amdhsa_group_segment_fixed_size 0
  .amdhsa_kernarg_size 112
  .amdhsa_user_sgpr_count 2
  .amdhsa_user_sgpr_kernarg_segment_ptr 1
  .amdhsa_system_sgpr_workgroup_id_x 1
  .amdhsa_float_denorm_mode_32 3
.end_amdhsa_kernel
"""
    return body, desc, (nv, na, ns, nfv)
```
